```python
import torch

def _softmax(x, axis=-1):
    return torch.softmax(x, dim=axis)
def _gelu(x):
    return torch.nn.functional.gelu(x, approximate="tanh")
def _silu(x):
    return torch.nn.functional.silu(x)
def _sigmoid(x):
    return torch.sigmoid(x)
def _layernorm(x, axis=-1, eps=1e-5):
    m = x.mean(dim=axis, keepdim=True)
    v = x.var(dim=axis, keepdim=True, unbiased=False)
    return (x - m) / torch.sqrt(v + eps)
def _scatter_add(tgt, idx, src, axis=0):
    return tgt.clone().index_add_(axis, idx, src)
def _segment_sum(src, seg, n):
    out = torch.zeros((n,) + src.shape[1:], dtype=src.dtype)
    return out.index_add_(0, seg, src)
def _pad(x, pw):
    flat = tuple(v for pair in reversed(pw) for v in pair)
    return torch.nn.functional.pad(x, flat)

kernel_name = 'standalone__mha_softmax__near_ridge'

def setup_inputs():

    _w = (lambda a: (lambda t: t.to(torch.bfloat16) if t.is_floating_point() else t)(torch.as_tensor(a)))
    B, H, Sq, Sk, D = 8, 32, 192, 512, 128
    return {
        "q": _w((lambda *s: torch.randn(*s, dtype=torch.bfloat16) * 0.8)(B, H, Sq, D)),
        "k": _w((lambda *s: torch.randn(*s, dtype=torch.bfloat16) * 0.8)(B, H, Sk, D)),
        "v": _w((lambda *s: torch.randn(*s, dtype=torch.bfloat16) * 0.05)(B, H, Sk, D)),
    }

def reference(q, k, v):
    scale = q.shape[-1] ** -0.5
    scores = torch.einsum("bhqd,bhkd->bhqk", q, k) * scale
    p = _softmax(scores, axis=-1)
    return torch.einsum("bhqk,bhkd->bhqd", p, v)
```

```python
import re

class Ins:
    __slots__ = ("text", "kind", "reads", "writes", "cost", "passes", "creads", "tag")
    def __init__(self, text, kind, reads=(), writes=(), cost=1, passes=0, creads=()):
        self.text = text; self.kind = kind
        self.reads = frozenset(reads); self.writes = frozenset(writes)
        self.cost = cost; self.passes = passes; self.creads = frozenset(creads); self.tag = None

def regs(name, n=1):
    raise NotImplementedError

class R:
    def __init__(self, file, base, n=1):
        self.file = file; self.base = base; self.n = n
    def __str__(self):
        if self.n == 1: return f"{self.file}{self.base}"
        return f"{self.file}[{self.base}:{self.base+self.n-1}]"
    def __getitem__(self, i):
        if isinstance(i, slice):
            a = i.start or 0; b = self.n if i.stop is None else i.stop
            assert 0 <= a < b <= self.n
            return R(self.file, self.base + a, b - a)
        assert 0 <= i < self.n
        return R(self.file, self.base + i, 1)
    def set(self):
        return {(self.file, self.base + i) for i in range(self.n)}

def rs(*xs):
    s = set()
    for x in xs:
        if isinstance(x, R): s |= x.set()
    return s

def mfma16(d, a, b, c):
    cs = c if not isinstance(c, R) else str(c)
    return Ins(f"v_mfma_f32_16x16x32_bf16 {d}, {a}, {b}, {cs}", "mfma", rs(a, b, c), rs(d), 2, 4, rs(c))
def mfma32(d, a, b, c):
    cs = c if not isinstance(c, R) else str(c)
    return Ins(f"v_mfma_f32_32x32x16_bf16 {d}, {a}, {b}, {cs}", "mfma", rs(a, b, c), rs(d), 2, 8, rs(c))
def valu(op, d, *srcs, kind="valu", cost=1, extra_reads=(), mods=""):
    t = f"{op} {d}, " + ", ".join(str(s) for s in srcs) + (" " + mods if mods else "")
    return Ins(t, kind, rs(*srcs) | rs(*extra_reads), rs(d), cost)
def trans(op, d, s):
    return valu(op, d, s, kind="trans", cost=2)
def permswap(op, a, b):
    return Ins(f"{op} {a}, {b}", "perm", rs(a, b), rs(a, b), 1)
def dsread(op, d, addr, off):
    assert 0 <= off < 65536, off
    return Ins(f"{op} {d}, {addr} offset:{off}", "dsr", rs(addr), rs(d), 1)
def dswrite(op, addr, data, off):
    assert 0 <= off < 65536, off
    return Ins(f"{op} {addr}, {data} offset:{off}", "dsw", rs(addr, data), (), 1)
def salu(text, reads=(), writes=()):
    return Ins(text, "salu", rs(*reads), rs(*writes), 1)
def raw(text, kind="other", reads=(), writes=(), cost=1):
    return Ins(text, kind, rs(*reads), rs(*writes), cost)
M0 = R("m", 0)
VCC = R("vcc", 0)
class _VCC(R):
    def __str__(self): return "vcc"
VCC = _VCC("vcc", 0)

VALU_KINDS = ("valu", "trans", "perm")

def finalize(prog, init_conservative=False):
    out = []
    hist = []
    state = 0
    ds_pending = []
    ds_seq = 0
    def need(ins):
        req = 0
        for (st, p) in hist:
            el = state - st
            r = 0
            if p.kind == "mfma":
                tbl_v = {4: 8, 8: 12}[p.passes]
                if ins.kind == "mfma":
                    ab = ins.reads - ins.creads
                    if p.writes & ab: r = max(r, tbl_v)
                    if p.writes & ins.creads:
                        if p.writes == ins.creads and p.passes == ins.passes: pass
                        else: r = max(r, {4: 6, 8: 10}[p.passes])
                    if (p.writes & ins.writes) and not (p.writes & ins.creads):
                        r = max(r, {4: 6, 8: 10}[p.passes])
                elif ins.kind in VALU_KINDS or ins.kind in ("dsr", "dsw", "vmem", "dma"):
                    if p.writes & (ins.reads | ins.writes): r = max(r, tbl_v)
                    if ins.kind in VALU_KINDS and (p.creads & ins.writes): r = max(r, {4: 3, 8: 7}[p.passes])
            elif p.kind in VALU_KINDS:
                if ins.kind == "mfma" and (p.writes & ins.reads): r = max(r, 2)
                if ins.kind == "perm" and (p.writes & ins.reads): r = max(r, 2)
                if p.kind == "trans" and ins.kind in ("valu", "perm") and (p.writes & ins.reads): r = max(r, 1)
                if ins.text.startswith("v_readfirstlane") and (p.writes & ins.reads): r = max(r, 1)
                sw = {x for x in p.writes if x[0] in ("s", "vcc")}
                if sw:
                    if ins.kind in VALU_KINDS and (sw & ins.reads): r = max(r, 2)
                    if ins.kind in ("vmem", "dma") and (sw & ins.reads): r = max(r, 5)
                    if ins.kind == "salu" and (sw & ins.reads): r = max(r, 1)
            elif p.kind == "salu":
                if ("m", 0) in p.writes and ins.kind == "dma": r = max(r, 1)
            elif p.kind == "vmem":
                if p.reads & ins.writes and ins.kind in VALU_KINDS + ("dsr",): r = max(r, 2)
            req = max(req, r - el)
        return req
    for ins in prog:
        if ins.kind == "label" or ins.kind == "comment":
            out.append(ins.text); continue
        touch = ins.reads | ins.writes
        lastneeded = None
        for (sq, rg) in ds_pending:
            if rg & touch: lastneeded = sq
        if ins.kind == "lgkm0":
            if ds_pending:
                out.append("s_waitcnt lgkmcnt(0)"); state += 1
            ds_pending = []
            continue
        if lastneeded is not None:
            n = ds_seq - 1 - lastneeded
            n = min(n, 15)
            out.append(f"s_waitcnt lgkmcnt({n})" + ("" if ins.kind == "lgkmfor" else " ; auto")); state += 1
            ds_pending = [(sq, rg) for (sq, rg) in ds_pending if sq > ds_seq - 1 - n]
        if ins.kind == "lgkmfor": continue
        k = need(ins)
        while k > 0:
            m = min(k, 16)
            out.append(f"s_nop {m-1}"); state += m; k -= m
        out.append(ins.text)
        state += 1
        if ins.kind == "dsr":
            ds_pending.append((ds_seq, set(ins.writes))); ds_seq += 1
        elif ins.kind == "dsw":
            ds_pending.append((ds_seq, set())); ds_seq += 1
        elif ins.kind == "smem0":
            ds_pending = []
        hist.append((state, ins))
        hist = [(st, p) for (st, p) in hist if state - st < 24]
    return out, ds_pending

def interleave(mf, fill, lead=0):
    if not mf: return list(fill)
    total = sum(f.cost for f in fill)
    out = []
    fi = 0; acc = 0.0
    n = len(mf)
    for i, m in enumerate(mf):
        out.append(m)
        target = total * (i + 1) / n
        while fi < len(fill) and acc + fill[fi].cost * 0.5 <= target + 1e-9:
            out.append(fill[fi]); acc += fill[fi].cost; fi += 1
    out.extend(fill[fi:])
    return out


def lgkmfor(*regs):
    return Ins("", "lgkmfor", rs(*regs), ())

class Item:
    _seq = 0
    def __init__(self, ins, cls, rel=-10**9, dl=10**9, after=(), name=""):
        self.ins = ins if isinstance(ins, list) else [ins]
        self.cls = cls; self.rel = rel; self.dl = dl; self.after = list(after)
        self.gap = None; self.name = name
        Item._seq += 1; self.seq = Item._seq

def schedule(mfmas, items, g0=0, verbose=False, narrow=(), ldsmax=24, ldsdecay=16):
    out = []
    todo = list(items)
    changed = True
    while changed:
        changed = False
        for it in todo:
            for (d, dist) in it.after:
                if d.gap is None and d.dl > it.dl - dist:
                    d.dl = it.dl - dist; changed = True
    over = 0
    ldsq = 0
    def ldscost(it):
        t = it.ins[0].text
        return 16 if "b128" in t else 8
    for i, m in enumerate(mfmas):
        g = g0 + i
        out.append(m)
        ldsq = max(0, ldsq - ldsdecay)
        placed = []
        cap = 2 if g not in narrow else 1
        sc_free = True
        def ready(it):
            if it.rel > g: return False
            for (d, dist) in it.after:
                if d.gap is None or d.gap + dist > g: return False
            return True
        while True:
            cands = [it for it in todo if ready(it)]
            cands.sort(key=lambda it: (it.dl, it.seq))
            pick = None
            for it in cands:
                forced = it.dl <= g
                if it.cls == "sc": ok = sc_free
                elif it.cls == "bar": ok = sc_free and cap == 2
                elif it.cls == "full": ok = cap == 2
                elif it.cls == "va": ok = cap >= 1
                elif it.cls == "ds":
                    ok = cap >= 1 and not any(d in placed and d.cls in ("va", "full", "bar") for (d, _) in it.after)
                    if ldsq + ldscost(it) > ldsmax and it.dl > g + 1: ok = False
                else: raise ValueError(it.cls)
                if ok or forced:
                    pick = it
                    if not ok: over += 1
                    break
            if pick is None: break
            if pick.cls in ("va", "ds") and cap == 2 and pick.dl > g + 1:
                pick.gap = g
                q2 = ldsq + (ldscost(pick) if pick.cls == "ds" else 0)
                partner = any(x is not pick and x.cls in ("va", "ds") and ready(x) and not (x.cls == "ds" and (q2 + ldscost(x) > ldsmax or any(d is pick and pick.cls == "va" for (d, _) in x.after))) for x in todo)
                pick.gap = None
                if not partner:
                    fulls = [x for x in cands if x.cls == "full"]
                    if fulls: pick = fulls[0]
            it = pick
            it.gap = g; placed.append(it); todo.remove(it)
            if it.cls in ("sc", "bar"): sc_free = False
            if it.cls in ("bar", "full"): cap -= 2
            if it.cls in ("va", "ds"): cap -= 1
            if it.cls == "ds": ldsq += ldscost(it)
        rank = {"sc": 0, "bar": 1, "ds": 2, "full": 3, "va": 3}
        rem = sorted(placed, key=lambda it: (rank[it.cls], it.seq))
        done = []
        while rem:
            for it in rem:
                if all((d not in rem) for (d, _) in it.after):
                    done.append(it); rem.remove(it); break
            else: raise RuntimeError("cycle")
        for it in done: out.extend(it.ins)
    return out, todo, over
```

```python
import sys, argparse, struct, math, re
from asmlib import *

ap = argparse.ArgumentParser()
ap.add_argument("--a", type=int, default=1, help="extra chunks PV lags (LAG = 2+3a)")
ap.add_argument("--x", type=int, default=0, help="last X chunks of V are loaded/processed by column halves")
ap.add_argument("--ldpol", default="nt")
ap.add_argument("--qpol", default=None)
ap.add_argument("--stpol", default="nt")
ap.add_argument("--stamps", action="store_true")
ap.add_argument("--allrt", action="store_true")
ap.add_argument("--minst", action="store_true", help="only start/end stamps")
ap.add_argument("--nslot", type=int, default=19)
ap.add_argument("--depth", type=int, default=4)
ap.add_argument("--kb", type=int, default=34, help="K barrier sits this many gaps before first use")
ap.add_argument("--vb", type=int, default=-1, help="V barrier gaps before first use; -1: share the K barrier")
ap.add_argument("--tb", type=int, default=8, help="tail barriers: gaps before first use")
ap.add_argument("--kb0", type=int, default=14)
ap.add_argument("--ldsmax", type=int, default=24)
ap.add_argument("--wstep", type=int, default=4)
ap.add_argument("--ldsdecay", type=int, default=16)
ap.add_argument("--lat", type=int, default=5)
ap.add_argument("--dmagap", type=int, default=4)
ap.add_argument("--padbar", type=int, default=0, help="diagnostic: idle cycles/64 after each barrier")
ap.add_argument("--padlist", default="", help="diagnostic: per-barrier pad counts, comma separated")
ap.add_argument("--burn", type=int, default=0, help="diagnostic: dummy MFMAs per Q block wait")
ap.add_argument("--spin", type=int, default=0)
ap.add_argument("--nowait", action="store_true")
ap.add_argument("--thr", type=float, default=2.0**40)
ap.add_argument("--align", type=int, default=8)
ap.add_argument("--touch", type=int, default=0, help="bytes between code touch points (0 = off)")
ap.add_argument("--touchpos", type=int, default=0, help="0: after first DMAs, 1: before anything")
ap.add_argument("--base", type=lambda x: int(x, 0), default=0x300, help="page offset of the kernel entry")
ap.add_argument("-o", default="-")
args = ap.parse_args()
if args.qpol is None: args.qpol = args.ldpol
if args.minst or args.allrt: args.stamps = True

KN = "standalone__mha_softmax__near_ridge_kernel"
PIECE = 1056; CHUNK = 8 * PIECE; NSLOT = args.nslot
NCH = 16
A_ = args.a; X_ = args.x; LAG = 2 + 3 * A_; NPB = max(A_ + 1, X_)
NVN = NCH - X_
f2u = lambda x: struct.unpack("<I", struct.pack("<f", x))[0]
CSC = (128 ** -0.5) * math.log2(math.e)
FLAG_OFF = NSLOT * CHUNK
LDS = FLAG_OFF + 16

class Alloc:
    def __init__(self, f, start=0): self.f = f; self.n = start
    def get(self, n, align=1):
        self.n = (self.n + align - 1) // align * align
        r = R(self.f, self.n, n); self.n += n; return r
va = Alloc("v", 1); aa = Alloc("a", 0)
v0 = R("v", 0)
vLane = va.get(1); vDmaKV = va.get(1); vDmaQ = va.get(1); vDmaH = va.get(1); vSt = va.get(1)
vKa = [va.get(1) for _ in range(3)]
vVa = [va.get(1) for _ in range(3)]
vHa = [va.get(1) for _ in range(3)]
vEa = va.get(1); vEb = va.get(1)
vFlag = va.get(1)
vTmpAll = va.get(8, 2); vTmp = [vTmpAll[i] for i in range(8)]
vMinit = [va.get(1) for _ in range(3)]
vRcp = [va.get(2, 2) for _ in range(3)]
vNM = [va.get(4, 4) for _ in range(3)]
vO = [[va.get(4, 4) for t in range(8)] for qb in range(3)]
vL = [va.get(4, 4) for qb in range(3)]
vS = [[va.get(4, 4) for h in range(2)] for qb in range(3)]
vP = [[va.get(4, 4) for b in range(NPB)] for qb in range(3)]
QINV = (va.n + 48 <= 256)
rQ = [[(va if QINV else aa).get(4, 4) for s in range(4)] for qb in range(3)]
aOnes = aa.get(4, 4)
aK = [[[aa.get(4, 4) for s in range(4)] for h in range(2)] for b in range(2)]
aV = [[aa.get(4, 4) for t in range(8)] for b in range(2)]
aE = R("a", aK[0][0][0].base, 48)
NV = (va.n + 3) // 4 * 4
assert NV <= 256, NV
NA = aa.n

sQ = R("s", 4, 4); sK = R("s", 8, 4); sV = R("s", 12, 4); sO = R("s", 16, 4)
sW = R("s", 20); sT = R("s", 22); sM0W = R("s", 23); sOff = R("s", 24); sTmp = R("s", 25); sQW = R("s", 26)
sRerun = R("s", 27); sCnt = R("s", 28); sC2 = R("s", 30, 2)
sWS = R("s", 32, 4)
sST0 = R("s", 36, 2); sRT0 = R("s", 38, 2); sSTt = R("s", 40, 2); sRTt = R("s", 42, 2)
sStamp = [R("s", 44 + i) for i in range(56)]
nstamp = [0]

P = []
def E(*ins):
    for i in ins: P.append(i)
def C(t): P.append(Ins("; " + t, "comment"))
def label(n): P.append(Ins(n + ":", "label"))
def stamp_ins(final=False):
    if not args.stamps or (args.minst and not final): return []
    i = nstamp[0]; nstamp[0] += 2
    return [raw(f"s_memtime {sSTt}\ns_memrealtime {sRTt}\ns_waitcnt lgkmcnt(0)", "smem0"),
            salu(f"s_sub_u32 {sStamp[i]}, {sSTt[0]}, {sST0[0]}"), salu(f"s_sub_u32 {sStamp[i+1]}, {sRTt[0]}, {sRT0[0]}")] + ([salu(f"s_cmp_lg_u32 {sW}, {sW}")] if args.touch else [])
def stamp(final=False): E(*stamp_ins(final))

seq = []
for i in range(-1, 16 + A_):
    if i + 1 < NCH: seq.append(("K", i + 1))
    if 0 <= i - A_ < NVN: seq.append(("V", i - A_))
parts = [(hf, j) for hf in range(2) for j in range(NVN, NCH, 2)]
for (hf, j) in parts: seq.append(("H", hf, j))
assert len(seq) == 32
QSLOT0 = NSLOT - 6
slot_of = {c: (k % NSLOT) for k, c in enumerate(seq)}

def dma_ins(c, k):
    if c[0] == "H":
        srd, vo, off = sV, vDmaH, c[2] * 8192 + c[1] * 128
    else:
        srd, vo, off = (sK if c[0] == "K" else sV), vDmaKV, c[1] * 8192
    pre = []
    if k == 0:
        pre.append(salu(f"s_mov_b32 {sOff}, {off}", [], [sOff]))
        pre.append(salu(f"s_add_u32 m0, {sM0W}, {slot_of[c]*CHUNK}", [sM0W], [M0]))
    else:
        pre.append(salu(f"s_add_u32 m0, m0, 32", [M0], [M0]))
    d = raw(f"buffer_load_dwordx4 {vo}, {srd}, {sOff} offen offset:{k*1024} {args.ldpol} lds", "dma", [vo, srd, sOff, M0], [], 2)
    d.tag = c
    return pre, d
def dma_chunk(c):
    l = []
    for k in range(2):
        pre, d = dma_ins(c, k); l += pre[::-1] + [d]
    return l
def dma_q(qb):
    l = []
    for k in range(4):
        p = qb * 4 + k
        if k == 0:
            l.append(salu(f"s_add_u32 m0, {sQW}, {QSLOT0*CHUNK + p*PIECE}", [sQW], [M0]))
            l.append(salu(f"s_mov_b32 {sOff}, {p*1024}", [], [sOff]))
        else:
            l.append(salu(f"s_add_u32 m0, m0, 32", [M0], [M0]))
        d = raw(f"buffer_load_dwordx4 {vDmaQ}, {sQ}, {sOff} offen offset:{k*1024} {args.qpol} lds", "dma", [vDmaQ, sQ, sOff, M0], [], 2)
        d.tag = ("Q", qb); l.append(d)
    return l
def vmwait(cs):
    w = raw("VMWAIT", "vmwait"); w.tag = list(cs); return w
def resolve_vm(prog):
    n = 0; last = {}
    for ins in prog:
        if ins.kind in ("dma", "vmem"):
            n += 1
            if ins.tag is not None: last.setdefault(ins.tag, []).append(n)
        elif ins.kind == "vmwait":
            for c in ins.tag: assert len(last[c]) == (4 if c[0] == "Q" else 2), (c, last.get(c))
            k = n - max(last[c][-1] for c in ins.tag)
            assert k <= 63
            ins.text = "s_nop 0" if args.nowait else f"s_waitcnt vmcnt({k})"

def win(slot): return slot // 7, (slot % 7) * CHUNK
def k_read(j, h, s, slot=None):
    w, o = win(slot_of[("K", j)] if slot is None else slot)
    return dsread("ds_read_b128", aK[j & 1][h][s], vKa[w], o + h * 512 + s * 64)
def qk(n, zero=False):
    j, qb = divmod(n, 3)
    c0 = 0 if (j == 0 or zero) else vNM[qb]
    return [mfma16(vS[qb][h], aK[j & 1][h][s], rQ[qb][s], c0 if s == 0 else vS[qb][h]) for s in range(4) for h in range(2)]

mf = []
qk_first = {}; qk_last = {}; l_gap = {}; p_first = {}; p_last = {}
kuse = {}
vuse = {}
o_last = {}
def use(d, key, g):
    d[key] = (d[key][0], g) if key in d else (g, g)
def add_qk(n):
    j, qb = divmod(n, 3)
    qk_first[n] = len(mf)
    for k, m in enumerate(qk(n)):
        use(kuse, (j, k % 2, k // 2), len(mf)); mf.append(m)
    qk_last[n] = len(mf) - 1
def puse(n):
    p_first.setdefault(n, len(mf)); p_last[n] = len(mf)
def add_l(n):
    j, qb = divmod(n, 3)
    l_gap[n] = len(mf); puse(n)
    mf.append(mfma16(vL[qb], aOnes, vP[qb][j % NPB], 0 if j == 0 else vL[qb]))
vbuf = {}
vorder = [("V", j) for j in range(NVN)] + [("H", hf, j) for (hf, j) in parts]
for k, c in enumerate(vorder): vbuf[c] = k & 1
def add_pv(n):
    j, qb = divmod(n, 3)
    c = ("V", j)
    for t in range(8):
        use(vuse, (c, t), len(mf)); puse(n); o_last[(qb, t)] = len(mf)
        mf.append(mfma16(vO[qb][t], aV[vbuf[c]][t], vP[qb][j % NPB], 0 if j == 0 else vO[qb][t]))
def add_part(hf, j, qb):
    c = ("H", hf, j)
    for sel in range(2):
        for tt in range(4):
            t = 4 * hf + tt
            use(vuse, (c, 4 * sel + tt), len(mf)); puse(3 * (j + sel) + qb); o_last[(qb, t)] = len(mf)
            mf.append(mfma16(vO[qb][t], aV[vbuf[c]][4 * sel + tt], vP[qb][(j + sel) % NPB], vO[qb][t]))
slot_start = {}
add_qk(0)
pvq = list(range(3 * NVN))
tailq = [(hf, j, qb) for (hf, j) in parts for qb in range(3)]
n = 0
while n < 50 or pvq or tailq:
    slot_start[n] = len(mf)
    if n + 1 < 48: add_qk(n + 1)
    if 0 <= n - 2 < 48: add_l(n - 2)
    if n - LAG >= 0:
        if pvq: add_pv(pvq.pop(0))
        elif tailq:
            hf, j, qb = tailq[0]
            if 3 * (j + 1) + qb + 1 <= n:
                add_part(*tailq.pop(0))
    n += 1
NG = len(mf)

items = []
def I(ins, cls, rel=-10**9, dl=10**9, after=(), name=""):
    it = Item(ins, cls, rel, dl, after, name); items.append(it); return it
for n in range(48):
    j, qb = divmod(n, 3)
    S = [vS[qb][h][r] for h in range(2) for r in range(4)]
    p = vP[qb][j % NPB]
    rel = qk_last[n] + 3
    dl = p_first[n] - 2
    if n + 3 < 48: dl = min(dl, qk_first[n + 3] - 1)
    relp = p_last[n - 3 * NPB] if n - 3 * NPB >= 0 else -10**9
    pre = [None] * 8
    if j == 0:
        t0, t1 = vTmp[(0, 2, 6)[qb]], vTmp[(1, 3, 7)[qb]]
        ch = [(valu("v_max3_f32", t0, S[0], S[1], S[2]), "va"), (valu("v_max3_f32", t1, S[3], S[4], S[5]), "va"),
              (valu("v_max3_f32", t0, t0, S[6], S[7]), "va"), (valu("v_max3_f32", t0, t0, t1, vMinit[qb]), "va"),
              (valu("v_mov_b32", t1, t0), "va"), (permswap("v_permlane32_swap_b32", t0, t1), "full"),
              (valu("v_max_f32", t0, t0, t1), "va"), (valu("v_mov_b32", t1, t0), "va"),
              (permswap("v_permlane16_swap_b32", t0, t1), "full"), (valu("v_max_f32", t0, t0, t1), "va")]
        prev = None
        for ins, cls in ch:
            prev = I(ins, cls, rel, after=[(prev, 0)] if prev else [])
        nm = [I(valu("v_sub_f32", vNM[qb][r], 0, t0), "va", rel, qk_first[n + 3] - 2, [(prev, 0)]) for r in range(4)]
        for i in range(8): pre[i] = I(valu("v_sub_f32", S[i], S[i], t0), "va", rel, after=[(prev, 0)] + ([(pre[i-1], 0)] if i else [(nm[3], 0)]))
    ex = []
    for i in range(8):
        aft = ([(pre[i], 0)] if pre[i] else []) + ([(ex[-1], 0)] if ex else [])
        ex.append(I(trans("v_exp_f32", S[i], S[i]), "full", rel, dl - (7 - i) // 1 - 1, aft))
    for k in range(4):
        I(valu("v_cvt_pk_bf16_f32", p[k], S[2*k], S[2*k+1]), "va", relp, dl, [(ex[2*k], 1), (ex[2*k+1], 1)])
bars = []
bar_of = {}
def first_use(c):
    if c[0] == "K": return min(kuse[(c[1], h, s)][0] for h in range(2) for s in range(4))
    return min(vuse[(c, t)][0] for t in range(8))
groups = []
for c in seq[1:]:
    if c[0] == "K": g = first_use(c) - (args.kb if c[1] > A_ + 1 else min(args.kb, args.kb0))
    elif c[0] == "V" and args.vb < 0 and ("K", c[1] + A_ + 1) in slot_of: g = None
    elif c[0] == "V" and c[1] + A_ + 1 < NCH: g = first_use(c) - args.vb
    else: g = first_use(c) - args.tb
    if g is None: groups[-1][1].append(c)
    else:
        g = max(g, 0)
        if groups and g <= groups[-1][0]: g = groups[-1][0] + 1
        groups.append([g, [c]])
for g, cs in groups:
    pl = [int(x) for x in args.padlist.split(",")] if args.padlist else []
    npad = pl[len(bars)] if len(bars) < len(pl) else args.padbar
    b = I([vmwait(cs), raw("s_barrier")] + [raw("s_nop 15") for _ in range(npad)] + stamp_ins(), "bar", g, g)
    bars.append((g, b, cs))
    for c in cs: bar_of[c] = b
read_done = {}
prev_rd = None
for c in seq[1:]:
    b = bar_of[c]
    frs = []
    if c[0] == "K":
        j = c[1]
        for s in range(4):
            for h in range(2):
                war = kuse[(j - 2, h, s)][1] if j >= 2 else -10**9
                frs.append(([k_read(j, h, s)], aK[j & 1][h][s], kuse[(j, h, s)][0], war))
    else:
        w, o = win(slot_of[c]); idx = vorder.index(c)
        for t in range(8):
            war = vuse[(vorder[idx - 2], t)][1] if idx >= 2 else -10**9
            fr = aV[vbuf[c]][t]
            if c[0] == "V":
                rd = [dsread("ds_read_b64_tr_b16", fr[2*h:2*h+2], vVa[w], o + h * 512 + t * 32) for h in range(2)]
            else:
                rd = [dsread("ds_read_b64_tr_b16", fr[2*h:2*h+2], vHa[w], o + (t // 4) * 512 + h * 256 + (t % 4) * 32) for h in range(2)]
            frs.append((rd, fr, vuse[(c, t)][0], war))
    its = []
    for rd, fr, fu, war in frs:
        l = []
        for r in rd:
            it = I(r, "ds", war, max(fu - args.lat, b.dl + 1), [(b, 1)] + ([(prev_rd, 0)] if prev_rd else []))
            prev_rd = it; l.append(it)
        its.append((l, fr, fu))
    tight = (first_use(c) - b.dl) < 12
    step = 1 if tight else args.wstep
    for k in range(0, 8, step):
        grp = its[k:k + step]
        fu = min(x[2] for x in grp)
        for x in grp:
            for r in x[0]: r.dl = min(r.dl, max(fu - args.lat, b.dl + 1))
        wt = I(lgkmfor(*[x[1] for x in grp]), "sc", fu - (1 if tight else 2), fu - 1, [(r, 0) for x in grp for r in x[0]])
        read_done[c] = wt
npro = 1 + args.depth
prev_d = None
for m in range(npro, 32):
    c = seq[m]
    b = bar_of[seq[m - args.depth]]
    for k in range(2):
        pre, d = dma_ins(c, k)
        aft0 = [(b, 0)] + ([(prev_d, 1)] if prev_d else [])
        ps = []
        for x in pre: ps.append(I(x, "sc", after=list(aft0)))
        dl = b.dl + 2 + args.dmagap * 5
        prev_d = I(d, "full", dl=dl, after=[(b, 1)] + [(x, 1) for x in ps] + ([(prev_d, args.dmagap)] if prev_d else []))
        prev_d.chunk = c
lastbar = bars[-1][1]
rc = []
for qb in range(3):
    r = I(trans("v_rcp_f32", vRcp[qb][0], vL[qb][0]), "full", l_gap[45 + qb] + 4, l_gap[47] + 8)
    r2 = I(valu("v_mov_b32", vRcp[qb][1], vRcp[qb][0]), "va", dl=l_gap[47] + 10, after=[(r, 1)])
    rc.append(r2)

if X_ == 0: EROW = 272; halves = [range(8)]
else: EROW = 144; halves = [range(4), range(4, 8)]
EWH = 48 * EROW
epi_groups = []
for hi, ts in enumerate(halves):
    for qb in range(3):
        epi_groups.append((hi, list(ts), qb))
def epi_store(hi, qb, k):
    if X_ == 0:
        idx = qb * 4 + k
        rd = dsread("ds_read_b128", aE[4*idx:4*idx+4], vEb, idx * 4 * EROW)
        st = raw(f"buffer_store_dwordx4 {aE[4*idx:4*idx+4]}, {vSt}, {sO}, s{96+qb} offen offset:{k*1024} {args.stpol}", "vmem", [aE[4*idx:4*idx+4], vSt, sO], [])
    else:
        idx = hi * 6 + qb * 2 + k
        rd = dsread("ds_read_b128", aE[4*idx:4*idx+4], vEb, hi * 4 * EWH + (qb * 16 + k * 8) * EROW)
        st = raw(f"buffer_store_dwordx4 {aE[4*idx:4*idx+4]}, {vSt}, {sO}, s{96+qb} offen offset:{k*2048 + hi*128} {args.stpol}", "vmem", [aE[4*idx:4*idx+4], vSt, sO], [])
    return rd, st, aE[4*idx:4*idx+4]
epi_items = {}
prev = None
klast = max(v[1] for v in kuse.values())
for (hi, ts, qb) in epi_groups:
    ws = []
    tl = []
    for t in ts:
        o = vO[qb][t]
        rel = o_last[(qb, t)] + 4
        ms = []
        for r in range(4):
            prev = I(valu("v_mul_f32", o[r], o[r], vRcp[qb][0]), "va", rel, after=[(rc[qb], 1)] + ([(prev, 0)] if prev else [])); ms.append(prev)
        a_ = prev = I(valu("v_cvt_pk_bf16_f32", o[0], o[0], o[1]), "va", after=[(prev, 0)])
        b_ = prev = I(valu("v_cvt_pk_bf16_f32", o[1], o[2], o[3]), "va", after=[(prev, 0)])
        w_ = I(dswrite("ds_write_b64", vEa, o[0:2], hi * 4 * EWH + qb * 16 * EROW + (t - ts[0]) * 32), "full", after=[(b_, 1)] + ([(ws[-1], 0)] if ws else []))
        ws.append(w_); tl.append((t, ms, a_, b_, w_))
    sts = []
    for k in range(len(ts) // 2):
        rd, st, reg = epi_store(hi, qb, k)
        ri = I(rd, "ds", klast + 1, after=[(ws[-1], 1)])
        wi = I(lgkmfor(reg), "sc", after=[(ri, 5)])
        si = I(st, "full", after=[(wi, 0)])
        sts.append((ri, wi, si))
    epi_items[(hi, qb)] = (tl, sts)

body, left, over = schedule(mf, items, ldsmax=args.ldsmax, ldsdecay=args.ldsdecay)
for it in items:
    if hasattr(it, "chunk"):
        m = seq.index(it.chunk)
        if m >= NSLOT:
            old = seq[m - NSLOT]
            rdg = read_done[old].gap if old in read_done else -1
            assert any(rdg < g < it.gap for g, _, _ in bars), (it.chunk, old)
leftset = set(id(x) for x in left)
post = []
pend_st = []
for (hi, ts, qb) in epi_groups:
    tl, sts = epi_items[(hi, qb)]
    wq = []
    cnt = 0
    for (t, ms, a_, b_, w_) in tl:
        o = vO[qb][t]
        if all(id(m) in leftset for m in ms):
            post += [valu("v_pk_mul_f32", o[0:2], o[0:2], vRcp[qb]), valu("v_pk_mul_f32", o[2:4], o[2:4], vRcp[qb])]
        else:
            for m in ms:
                if id(m) in leftset: post += m.ins
        for x in (a_, b_):
            if id(x) in leftset: post += x.ins
        if id(w_) in leftset: wq += w_.ins
        cnt += 1
        if cnt % 2 == 0:
            post += wq; wq = []
            if pend_st and cnt >= 2: post += pend_st[:2]; pend_st = pend_st[2:]
    post += wq
    for (ri, wi, si) in sts:
        if id(ri) in leftset: post += ri.ins
    post += pend_st; pend_st = []
    for (ri, wi, si) in sts:
        if id(si) in leftset: pend_st += si.ins
post += pend_st
known = set()
for (tl, sts) in epi_items.values():
    for (t, ms, a_, b_, w_) in tl: known |= {id(x) for x in ms + [a_, b_, w_]}
    for tr in sts: known |= {id(x) for x in tr}
other = [x for x in left if id(x) not in known]
assert not other, [x.ins[0].text for x in other]
pre_post = [i for x in other for i in x.ins]

E(salu("s_cmp_ge_u32 s2, 256"), raw("s_cbranch_scc1 L_end"))
E(raw("s_load_dwordx4 s[4:7], s[0:1], 0"), raw("s_load_dwordx4 s[12:15], s[0:1], 16"))
if args.stamps:
    E(raw(f"s_load_dwordx2 {sWS[0:2]}, s[0:1], 40"), raw(f"s_memrealtime {sRT0}"), raw(f"s_memtime {sST0}"))
elif args.spin:
    E(raw(f"s_memrealtime {sRT0}"))
E(valu("v_and_b32", vLane, 63, v0))
E(valu("v_lshrrev_b32", vTmp[0], 6, v0))
E(valu("v_lshlrev_b32", vTmp[1], 4, vLane))
E(valu("v_readfirstlane_b32", sW, vTmp[0]))
E(valu("v_lshl_add_u32", vDmaKV, vTmp[0], 11, vTmp[1]))
E(valu("v_mul_u32_u24", vTmp[2], 12288, vTmp[0]))
E(valu("v_add_u32", vDmaQ, vTmp[2], vTmp[1]))
E(salu(f"s_mul_i32 {sM0W}, {sW}, {2*PIECE}", [sW], [sM0W]))
E(salu(f"s_mul_i32 {sQW}, {sW}, {12*PIECE}", [sW], [sQW]))
E(salu(f"s_mul_i32 s28, s2, 49152"))
E(salu(f"s_lshl_b32 s29, s2, 17"))
E(salu(f"s_mov_b32 {sRerun}, 0"))
for qb in range(3): E(valu("v_mov_b32", vMinit[qb], "0xff800000"))
E(raw("s_waitcnt lgkmcnt(0)"))
E(salu("s_add_u32 s8, s6, s29"), salu("s_addc_u32 s9, s7, 0"))
E(salu("s_add_u32 s4, s4, s28"), salu("s_addc_u32 s5, s5, 0"))
E(salu("s_mov_b32 s6, 49152"), salu("s_mov_b32 s7, 0x20000"))
E(salu("s_add_u32 s16, s14, s28"), salu("s_addc_u32 s17, s15, 0"))
E(salu("s_add_u32 s12, s12, s29"), salu("s_addc_u32 s13, s13, 0"))
E(salu("s_mov_b32 s10, 131072"), salu("s_mov_b32 s11, 0x20000"))
E(salu("s_mov_b32 s14, 131072"), salu("s_mov_b32 s15, 0x20000"))
E(salu("s_mov_b32 s18, 49152"), salu("s_mov_b32 s19, 0x20000"))
label("L_restart")
pro = list(seq[:npro])
assert npro <= QSLOT0
for qb in range(3): E(*dma_q(qb))
E(*dma_chunk(pro.pop(0)))
C("TOUCH0")
E(valu("v_and_b32", vTmp[0], 7, vLane))
E(valu("v_bfe_u32", vTmp[1], vLane, 3, 1))
E(valu("v_lshrrev_b32", vTmp[2], 4, vLane))
E(valu("v_mul_u32_u24", vTmp[0], PIECE, vTmp[0]))
E(valu("v_lshl_add_u32", vTmp[0], vTmp[1], 8, vTmp[0]))
E(valu("v_lshl_add_u32", vKa[0], vTmp[2], 4, vTmp[0]))
E(valu("v_add_u32", vKa[1], 7 * CHUNK, vKa[0]))
E(valu("v_add_u32", vKa[2], 14 * CHUNK, vKa[0]))
E(valu("v_bfe_u32", vTmp[0], vLane, 2, 3))
E(valu("v_lshrrev_b32", vTmp[1], 5, vLane))
E(valu("v_and_b32", vTmp[3], 3, vLane))
E(valu("v_mul_u32_u24", vTmp[0], PIECE, vTmp[0]))
E(valu("v_lshl_add_u32", vTmp[0], vTmp[3], 3, vTmp[0]))
E(valu("v_lshl_add_u32", vVa[0], vTmp[1], 8, vTmp[0]))
E(valu("v_add_u32", vVa[1], 7 * CHUNK, vVa[0]))
E(valu("v_add_u32", vVa[2], 14 * CHUNK, vVa[0]))
if X_:
    E(valu("v_lshl_add_u32", vHa[0], vTmp[1], 7, vTmp[0]))
    E(valu("v_add_u32", vHa[1], 7 * CHUNK, vHa[0]))
    E(valu("v_add_u32", vHa[2], 14 * CHUNK, vHa[0]))
    E(valu("v_bfe_u32", vTmp[0], vLane, 3, 2))
    E(valu("v_and_b32", vTmp[5], 7, vLane))
    E(valu("v_lshlrev_b32", vTmp[0], 8, vTmp[0]))
    E(valu("v_lshl_add_u32", vTmp[0], vTmp[1], 13, vTmp[0]))
    E(valu("v_lshl_add_u32", vTmp[0], vTmp[5], 4, vTmp[0]))
    E(valu("v_lshl_add_u32", vDmaH, sW, 11, vTmp[0]))
vQa = vTmp[4]
E(valu("v_bfe_u32", vTmp[0], vLane, 2, 2))
E(valu("v_mul_u32_u24", vTmp[0], PIECE, vTmp[0]))
E(valu("v_lshl_add_u32", vTmp[0], vTmp[3], 8, vTmp[0]))
E(valu("v_lshl_add_u32", vTmp[0], vTmp[2], 4, vTmp[0]))
E(valu("v_add_u32", vTmp[0], sQW, vTmp[0]))
E(valu("v_add_u32", vQa, QSLOT0 * CHUNK, vTmp[0]))
first_w = min(w_.gap if w_.gap is not None else NG for (tl, _) in epi_items.values() for (_, _, _, _, w_) in tl)
gb = max(g for g, _, _ in bars if g < first_w)
busy = {slot_of[c] for c in seq[1:] if read_done[c].gap >= gb}
need = (len(halves) * 4 * EWH + CHUNK - 1) // CHUNK
ebase = None
for s0 in range(NSLOT - need + 1):
    if not (set(range(s0, s0 + need)) & busy): ebase = s0 * CHUNK; break
assert ebase is not None, busy
E(salu(f"s_mul_i32 {sTmp}, {sW}, {EWH}", [sW], [sTmp]))
E(salu(f"s_add_u32 {sTmp}, {sTmp}, {ebase}", [sTmp], [sTmp]))
E(valu("v_and_b32", vTmp[0], 15, vLane))
E(valu("v_mul_u32_u24", vTmp[1], EROW, vTmp[0]))
E(valu("v_lshl_add_u32", vTmp[1], vTmp[2], 3, vTmp[1]))
E(valu("v_add_u32", vEa, sTmp, vTmp[1]))
if X_ == 0:
    E(valu("v_mul_u32_u24", vTmp[1], EROW, vTmp[2]))
    E(valu("v_lshl_add_u32", vTmp[1], vTmp[0], 4, vTmp[1]))
    E(valu("v_add_u32", vEb, sTmp, vTmp[1]))
    E(valu("v_mov_b32", vSt, vDmaQ))
else:
    E(valu("v_lshrrev_b32", vTmp[0], 3, vLane))
    E(valu("v_mul_u32_u24", vTmp[1], EROW, vTmp[0]))
    E(valu("v_lshl_add_u32", vTmp[1], vTmp[5], 4, vTmp[1]))
    E(valu("v_add_u32", vEb, sTmp, vTmp[1]))
    E(salu(f"s_mul_i32 {sTmp}, {sW}, 12288", [sW], [sTmp]))
    E(valu("v_lshlrev_b32", vTmp[0], 8, vTmp[0]))
    E(valu("v_lshl_add_u32", vTmp[0], vTmp[5], 4, vTmp[0]))
    E(valu("v_add_u32", vSt, sTmp, vTmp[0]))
for qb in range(3): E(salu(f"s_mov_b32 s{96+qb}, {qb*4096}"))
E(salu(f"s_mov_b32 {sT}, {hex(f2u(args.thr))}", [], [sT]))
E(salu(f"s_mov_b32 {sC2[0]}, {hex(f2u(CSC))}", [], [sC2[0]]), salu(f"s_mov_b32 {sC2[1]}, {hex(f2u(CSC))}", [], [sC2[1]]))
E(valu("v_mov_b32", vTmp[0], "0x3f803f80"))
for r in range(4): E(valu("v_accvgpr_write_b32", aOnes[r], vTmp[0]))
E(valu("v_mov_b32", vFlag, FLAG_OFF))
E(valu("v_mov_b32", vTmp[0], 0))
E(dswrite("ds_write_b32", vFlag, vTmp[0], 0))
C("TOUCH1")
per = (len(pro) + 2) // 3
if args.burn:
    for k in range(8):
        for r in range(4):
            E(valu("v_mul_u32_u24", vS[k // 4][(k // 2) % 2][r] if False else vP[k % 3][0][r], 0x9e3779 + 77 * k + 13 * r, v0))
            E(valu("v_and_b32", vP[k % 3][0][r], "0x3fff3fff", vP[k % 3][0][r]))
for qb in range(3):
    for k in range(args.burn):
        E(mfma16(vS[k % 3][(k // 3) % 2], vP[(k + 1) % 3][0], vP[k % 3][0], 0))
    E(vmwait([("Q", qb)]))
    raw_q = [rQ[qb][s] if QINV else vO[qb][s] for s in range(4)]
    for s in range(4):
        E(dsread("ds_read_b128", raw_q[s], vQa, qb * 4 * PIECE + s * 64))
    for c in pro[qb*per:(qb+1)*per]: E(*dma_chunk(c))
    for s in range(4):
        for r in range(4):
            x = raw_q[s][r]
            t = vTmpAll[(2 * (r & 1)):(2 * (r & 1)) + 2]
            E(valu("v_lshlrev_b32", t[0], 16, x))
            E(valu("v_and_b32", t[1], "0xffff0000", x))
            E(valu("v_pk_mul_f32", t, t, sC2))
            E(valu("v_cvt_pk_bf16_f32", x, t[0], t[1]))
            if not QINV: E(valu("v_accvgpr_write_b32", rQ[qb][s][r], x))
E(Ins("", "lgkm0"), vmwait([seq[0]]), raw("s_barrier"))
stamp()
for s in range(4):
    for h in range(2): E(k_read(0, h, s))
C("main")
E(*body)
C("post")
stamp()
E(*pre_post)
E(*post)
stamp()
E(valu("v_add_f32", vTmp[1], vL[0][0], vL[1][0]))
E(valu("v_add_f32", vTmp[1], vTmp[1], vL[2][0]))
E(valu("v_cmp_nge_f32", VCC, sT, vTmp[1]))
E(raw("s_cbranch_vccnz L_setflag\nL_setflag_ret:", "branch", [VCC], []))
E(raw("s_barrier"))
E(dsread("ds_read_b32", vTmp[5], vFlag, 0))
E(valu("v_readfirstlane_b32", sTmp, vTmp[5]))
E(salu(f"s_cmp_gt_u32 {sTmp}, {sRerun}", [sTmp, sRerun], []))
E(raw("s_cbranch_scc1 L_fallback"))
if args.stamps:
    E(raw("s_waitcnt vmcnt(0)"))
    stamp(final=True)
    E(salu(f"s_mov_b32 {sWS[2]}, 0x10000000"), salu(f"s_mov_b32 {sWS[3]}, 0x20000"))
    E(salu(f"s_lshl_b32 s3, s2, 2"), salu(f"s_add_u32 s3, s3, {sW}"), salu("s_lshl_b32 s3, s3, 8"))
    E(valu("v_mov_b32", vTmp[5], "s3"))
    E(valu("v_cmp_eq_u32", VCC, 0, vLane))
    E(raw("s_and_saveexec_b64 s[28:29], vcc"))
    order = []
    for ins in P:
        if ins.kind == "salu" and ins.text.startswith("s_sub_u32 s") and (f", {sST0[0]}" in ins.text or f", {sRT0[0]}" in ins.text):
            order.append(ins.text.split()[1].rstrip(","))
    words = [str(sRT0[0]), str(sRTt[0])] + order
    for k, wd in enumerate(words):
        E(valu("v_mov_b32", vO[k // 32][(k // 4) % 8][k % 4], wd))
    for k in range(0, len(words), 4):
        E(raw(f"buffer_store_dwordx4 {vO[k//32][(k//4)%8]}, {vTmp[5]}, {sWS}, 0 offen offset:{4*k}", "vmem", [vO[k//32][(k//4)%8], vTmp[5]], []))
if args.spin:
    E(raw("s_waitcnt vmcnt(0)"))
    label("L_spin")
    E(raw(f"s_memrealtime {sSTt}\ns_waitcnt lgkmcnt(0)", "smem0"))
    E(salu(f"s_sub_u32 s3, {sSTt[0]}, {sRT0[0]}"), salu(f"s_cmp_lt_u32 s3, {args.spin}"), raw("s_cbranch_scc1 L_spin"))
label("L_end")
E(raw("s_endpgm"))
resolve_vm(P)
main, pend_ = finalize(P)

tail = []
Q = [valu("v_mov_b32", vTmp[0], 1), raw("s_nop 0"), dswrite("ds_write_b32", vFlag, vTmp[0], 0), raw("s_waitcnt lgkmcnt(0)"), raw("s_branch L_setflag_ret")]
tail += ["L_setflag:"] + [q.text for q in Q]
Q = []
Q.append(raw("s_waitcnt vmcnt(0) lgkmcnt(0)")); Q.append(raw("s_barrier"))
Q.append(salu(f"s_mov_b32 {sRerun}, 1")); Q.append(salu(f"s_mov_b32 {sCnt}, 0"))
body0, _ = finalize(Q)
Q = []
Q.append(salu(f"s_mov_b32 m0, {sM0W}", [sM0W], [M0]))
Q.append(raw(f"buffer_load_dwordx4 {vDmaKV}, {sK}, {sCnt} offen lds", "dma", [M0], []))
Q.append(salu(f"s_add_u32 m0, m0, 32", [M0], [M0]))
Q.append(raw(f"buffer_load_dwordx4 {vDmaKV}, {sK}, {sCnt} offen offset:1024 lds", "dma", [M0], []))
Q.append(raw("s_waitcnt vmcnt(0)")); Q.append(raw("s_barrier"))
Q += [k_read(0, h, s, slot=0) for s in range(4) for h in range(2)]
Q.append(Ins("", "lgkm0")); Q.append(raw("s_barrier"))
for qb in range(3): Q += qk(qb, zero=True)
for qb in range(3):
    S = [vS[qb][h][r] for h in range(2) for r in range(4)]
    for k in range(4): Q.append(valu("v_max3_f32", vMinit[qb], vMinit[qb], S[2*k], S[2*k+1]))
Q.append(salu(f"s_add_u32 {sCnt}, {sCnt}, 8192")); Q.append(salu(f"s_cmp_lt_u32 {sCnt}, 131072"))
Q.append(raw("s_cbranch_scc1 L_maxloop")); Q.append(raw("s_branch L_restart"))
body1, _ = finalize(Q)
tail += ["L_fallback:"] + body0 + ["L_maxloop:"] + body1

hdr = [l for l in open("standalone__mha_softmax__near_ridge.s.ref").read().split("\n") if l.startswith(";") and "@launch" not in l]
out = hdr + [f"; @launch grid=(256,1,1) block=(256,1,1) lds={LDS}",
    '.amdgcn_target "amdgcn-amd-amdhsa--gfx950"', ".text", f".globl {KN}", ".p2align 8", f".type {KN},@function", f"{KN}:"]
main = [x for l in main for x in l.split("\n")]
tail = [x for l in tail for x in l.split("\n")]
if args.align > 8: out.insert(out.index(".p2align 8"), f".p2align {args.align}")
def offsets(lines):
    import subprocess, tempfile, os
    d = tempfile.mkdtemp()
    open(d + "/a.s", "w").write('.amdgcn_target "amdgcn-amd-amdhsa--gfx950"\n.text\n' + "\n".join(lines) + "\n")
    subprocess.check_call(["clang", "-x", "assembler", "-target", "amdgcn-amd-amdhsa", "-mcpu=gfx950", "-c", d + "/a.s", "-o", d + "/a.o"])
    dis = subprocess.check_output(["llvm-objdump", "-d", d + "/a.o"], text=True)
    offs = [int(m.group(1), 16) for m in re.finditer(r"// ([0-9A-F]{12}):", dis)]
    res = []; k = 0
    for l in lines:
        isins = not (l.startswith(";") or l.endswith(":") or not l.strip())
        res.append(offs[k] if k < len(offs) else offs[-1] + 4)
        if isins: k += 1
    assert k == len(offs), (k, len(offs))
    return [x + args.base for x in res]
if args.touch:
    ti = main.index(f"; TOUCH{args.touchpos}")
    endi = [i for i, l in enumerate(main) if l.startswith("v_cmp_nge_f32")][0]
    o0 = offsets(main + tail)
    pts = [x for x in range(args.touch, 1 << 16, args.touch) if o0[main.index("; main")] < x < o0[endi] - 64]
    npts = len(pts)
    disp = []
    for w in range(min(4, npts)):
        disp += [f"s_cmp_eq_u32 {sW}, {w}", f"s_cbranch_scc1 L_touch{w}"]
    disp += ["L_touch_ret:", f"s_cmp_lg_u32 {sW}, {sW}"]
    main[ti:ti+1] = disp
    for k in range(npts):
        o = offsets([l for l in main + tail] + [f"L_touch{j}:" for j in range(k, npts + 8)] + ["s_endpgm"])
        want = pts[k]
        cand = [i for i in range(1, len(main)) if o[i] >= want and main[i-1].startswith("v_mfma") and not main[i].startswith("s_")]
        i = cand[0] if cand and o[cand[0]] < want + 64 else [i for i in range(len(main)) if o[i] >= want and main[i-1].startswith("v_")][0]
        nxt = f"L_touch{k+4}" if k + 4 < npts else "L_touch_ret"
        main[i:i] = [f"L_touch{k}:", f"s_cbranch_scc1 {nxt}"]
        print(f"touch {k} at {hex(o[i])}", file=sys.stderr)
    scc_ok = False
    for l in main[ti:]:
        op = l.split()[0] if l.strip() else ""
        if l.startswith(f"s_cmp_lg_u32 {sW}, {sW}") or l.startswith("s_add_u32 m0"): scc_ok = True
        elif op.startswith("s_") and op not in ("s_mov_b32", "s_waitcnt", "s_barrier", "s_nop", "s_memtime", "s_memrealtime", "s_cbranch_scc1", "s_mul_i32"): scc_ok = False
        if re.match(r"L_touch\d+:", l): assert scc_ok, l
out += main + tail
out += ['.section .rodata,"a"', ".p2align 6", f".amdhsa_kernel {KN}",
    f"  .amdhsa_next_free_vgpr {NV+NA}", "  .amdhsa_next_free_sgpr 102", f"  .amdhsa_accum_offset {NV}",
    "  .amdhsa_group_segment_fixed_size 0", "  .amdhsa_kernarg_size 48", "  .amdhsa_user_sgpr_count 2",
    "  .amdhsa_user_sgpr_kernarg_segment_ptr 1", "  .amdhsa_system_sgpr_workgroup_id_x 1", ".end_amdhsa_kernel", ""]
txt = "\n".join(out)
if args.o == "-": print(txt)
else: open(args.o, "w").write(txt)
nauto = sum("; auto" in l for l in main); nnop = sum(l.startswith("s_nop") for l in main)
print(f"NV={NV} NA={NA} QINV={QINV} LDS={LDS} words={nstamp[0]+2} lines={len(out)} NG={NG} over={over} auto={nauto} nops={nnop} post={len(post)} ebase={ebase} bars={[g for g,_,_ in bars]}", file=sys.stderr)
```
